```python
import torch

def _softmax(x, axis=-1):
    return torch.softmax(x, dim=axis)
def _gelu(x):
    return torch.nn.functional.gelu(x, approximate="tanh")
def _silu(x):
    return torch.nn.functional.silu(x)
def _sigmoid(x):
    return torch.sigmoid(x)
def _layernorm(x, axis=-1, eps=1e-5):
    m = x.mean(dim=axis, keepdim=True)
    v = x.var(dim=axis, keepdim=True, unbiased=False)
    return (x - m) / torch.sqrt(v + eps)
def _scatter_add(tgt, idx, src, axis=0):
    return tgt.clone().index_add_(axis, idx, src)
def _segment_sum(src, seg, n):
    out = torch.zeros((n,) + src.shape[1:], dtype=src.dtype)
    return out.index_add_(0, seg, src)
def _pad(x, pw):
    flat = tuple(v for pair in reversed(pw) for v in pair)
    return torch.nn.functional.pad(x, flat)

kernel_name = 'concat_heads__ssm_conv_s5__grouped_kv_mqa__prompt'

def setup_inputs():

    _w = (lambda a: (lambda t: t.to(torch.bfloat16) if t.is_floating_point() else t)(torch.as_tensor(a)))
    def _A_setup():
        B, S, D = 1, 2048, 512
        P = D
        Lambda_re = -0.5 * (lambda _x: torch.exp(torch.as_tensor(_x)))((lambda *s: torch.randn(*s, dtype=torch.bfloat16) * 0.2)(P))
        Lambda_im = (lambda *s: torch.randn(*s, dtype=torch.bfloat16) * 0.4)(P) * 1.0
        B_re = (lambda *s: torch.randn(*s, dtype=torch.bfloat16) * 0.2)(P, D) * (D ** -0.5)
        B_im = (lambda *s: torch.randn(*s, dtype=torch.bfloat16) * 0.2)(P, D) * (D ** -0.5)
        C_re = (lambda *s: torch.randn(*s, dtype=torch.bfloat16) * 0.2)(D, P) * (P ** -0.5)
        C_im = (lambda *s: torch.randn(*s, dtype=torch.bfloat16) * 0.2)(D, P) * (P ** -0.5)
        log_dt = (lambda *s: torch.randn(*s, dtype=torch.bfloat16) * 0.2)(P) * 0.3 - 2.0
        Dskip = (lambda *s: torch.randn(*s, dtype=torch.bfloat16) * 0.05)(D)
        return {
            "x": _w((lambda *s: torch.randn(*s, dtype=torch.bfloat16) * 0.05)(B, S, D)),
            "Lambda_re": _w(Lambda_re),
            "Lambda_im": _w(Lambda_im),
            "B_re": _w(B_re),
            "B_im": _w(B_im),
            "C_re": _w(C_re),
            "C_im": _w(C_im),
            "log_dt": _w(log_dt),
            "Dskip": _w(Dskip),
        }
    _A_in = _A_setup()

    def _B_setup():
        B, S, D, H = 1, 2048, 512, 32
        Dh = D // H
        return {
            "x": _w((lambda *s: torch.randn(*s, dtype=torch.bfloat16) * 0.05)(B, S, D)),
            "wq": _w((lambda *s: torch.randn(*s, dtype=torch.bfloat16) * 0.8)(D, H * Dh)),
            "wk": _w((lambda *s: torch.randn(*s, dtype=torch.bfloat16) * 0.8)(D, Dh)),
            "wv": _w((lambda *s: torch.randn(*s, dtype=torch.bfloat16) * 0.05)(D, Dh)),
            "wo": _w((lambda *s: torch.randn(*s, dtype=torch.bfloat16) * 0.05)(H * Dh, D)),
        }
    _B_in = _B_setup()

    return {
        "A_x": _A_in["x"],
        "A_Lambda_re": _A_in["Lambda_re"],
        "A_Lambda_im": _A_in["Lambda_im"],
        "A_B_re": _A_in["B_re"],
        "A_B_im": _A_in["B_im"],
        "A_C_re": _A_in["C_re"],
        "A_C_im": _A_in["C_im"],
        "A_log_dt": _A_in["log_dt"],
        "A_Dskip": _A_in["Dskip"],
        "B_x": _B_in["x"],
        "B_wq": _B_in["wq"],
        "B_wk": _B_in["wk"],
        "B_wv": _B_in["wv"],
        "B_wo": _B_in["wo"],
    }

def reference(A_x, A_Lambda_re, A_Lambda_im, A_B_re, A_B_im, A_C_re, A_C_im, A_log_dt, A_Dskip, B_x, B_wq, B_wk, B_wv, B_wo):
    def _A_ref(x, Lambda_re, Lambda_im, B_re, B_im, C_re, C_im, log_dt, Dskip):
        Bsz, L, H = x.shape
        Lam = Lambda_re + 1j * Lambda_im
        Bmat = B_re + 1j * B_im
        Cmat = C_re + 1j * C_im
        dt = torch.exp(log_dt)
        Lam_bar = torch.exp(dt * Lam)
        B_bar = ((Lam_bar - 1.0) / Lam)[:, None] * Bmat
        Bu = torch.einsum("bld,pd->blp", x + 0j, B_bar)
        h = torch.zeros_like(Bu[:, 0, :])
        hs = []
        for t in range(L):
            h = Lam_bar[None, :] * h + Bu[:, t, :]
            hs.append(h)
        hseq = torch.stack(hs, 1)
        y = 2.0 * torch.einsum("blp,dp->bld", hseq, Cmat).real + x * Dskip[None, None, :]
        return y

    def _B_ref(x, wq, wk, wv, wo):
        B, S, D = x.shape
        H = 32
        Dh = D // H
        q = (lambda x, *d: x.permute(*d))((x @ wq).reshape(B, S, H, Dh), 0, 2, 1, 3)
        k = x @ wk
        v = x @ wv
        scores = torch.einsum("bhqd,bkd->bhqk", q, k) * (Dh ** -0.5)
        p = _softmax(scores, axis=-1)
        o = torch.einsum("bhqk,bkd->bhqd", p, v)
        return (lambda x, *d: x.permute(*d))(o, 0, 2, 1, 3).reshape(B, S, H * Dh) @ wo

    a = _A_ref(A_x, A_Lambda_re, A_Lambda_im, A_B_re, A_B_im, A_C_re, A_C_im, A_log_dt, A_Dskip)
    b = _B_ref(B_x, B_wq, B_wk, B_wv, B_wo)
    return torch.concatenate([a, b], axis=-1)
```

```python
import sys
kernels = []
def kern(name, body, iters=200, vgpr=128, pre=""):
    s = f"""
.text
.globl {name}
.p2align 8
.type {name},@function
{name}:
    s_load_dwordx2 s[4:5], s[0:1], 0
    v_lshrrev_b32 v1, 6, v0
    s_nop 1
    v_readfirstlane_b32 s12, v1
"""
    for i in range(2, vgpr):
        s += f"    v_mov_b32 v{i}, 0x3c003c00\n" if i % 2 else f"    v_mov_b32 v{i}, 0.5\n"
    s += pre
    s += f"""
    s_waitcnt lgkmcnt(0)
    s_mov_b32 s10, {iters}
    s_barrier
    s_memtime s[6:7]
    s_waitcnt lgkmcnt(0)
.p2align 6
L_{name}:
{body}
    s_sub_u32 s10, s10, 1
    s_cmp_lg_u32 s10, 0
    s_cbranch_scc1 L_{name}
    s_nop 15
    s_memtime s[8:9]
    s_waitcnt lgkmcnt(0)
    s_sub_u32 s8, s8, s6
    s_lshl_b32 s13, s2, 4
    s_add_u32 s13, s13, s12
    s_lshl_b32 s13, s13, 2
    v_mov_b32 v2, s13
    v_mov_b32 v3, s8
    global_store_dword v2, v3, s[4:5]
    s_waitcnt vmcnt(0)
    s_endpgm
.section .rodata,"a"
.p2align 6
.amdhsa_kernel {name}
  .amdhsa_next_free_vgpr {vgpr}
  .amdhsa_next_free_sgpr 32
  .amdhsa_accum_offset {vgpr}
  .amdhsa_group_segment_fixed_size 0
  .amdhsa_kernarg_size 8
  .amdhsa_user_sgpr_count 2
  .amdhsa_user_sgpr_kernarg_segment_ptr 1
  .amdhsa_system_sgpr_workgroup_id_x 1
.end_amdhsa_kernel
"""
    kernels.append((name, s, vgpr))

def emit(path):
    out = '.amdgcn_target "amdgcn-amd-amdhsa--gfx950"\n'
    for n, s, v in kernels:
        out += s
    out += "\n.amdgpu_metadata\n---\namdhsa.version: [1, 2]\namdhsa.kernels:\n"
    for n, s, v in kernels:
        out += f"""  - .name: {n}
    .symbol: {n}.kd
    .kernarg_segment_size: 8
    .kernarg_segment_align: 8
    .group_segment_fixed_size: 0
    .private_segment_fixed_size: 0
    .wavefront_size: 64
    .sgpr_count: 32
    .vgpr_count: {v}
    .max_flat_workgroup_size: 1024
    .args:
      - {{.name: outp, .size: 8, .offset: 0, .value_kind: global_buffer, .address_space: global}}
"""
    out += "...\n.end_amdgpu_metadata\n"
    open(path, "w").write(out)
    open(path + ".names", "w").write("\n".join(n for n, _, _ in kernels))
```

```python
from ubgen import *
import ubgen
def build(name, col, share, touch=0):
    body = ""
    if touch:
        body += "    s_lshl_b32 s28, s15, 17\n    s_lshl_b32 s29, s12, 15\n    s_add_u32 s28, s28, s29\n    s_add_u32 s28, s28, s27\n    v_and_b32 v5, 31, v0\n    v_lshlrev_b32 v5, 10, v5\n    buffer_load_dword v6, v5, s[16:19], s28 offen\n"
    for i in range(16):
        if i % 4 == 0: body += f"    s_add_u32 s22, s15, {i // 4}\n    s_and_b32 s22, s22, 3\n    s_lshl_b32 s22, s22, 2\n    s_add_u32 s22, s22, s12\n    s_lshl_b32 s23, s22, 12\n    s_lshl_b32 s20, s22, 15\n    s_add_u32 s20, s20, s27\n"
        body += f"    s_add_u32 m0, s23, {(i%4)*1024}\n    s_add_u32 s21, s20, {(i%4) * 8192}\n    buffer_load_dwordx4 v2, s[16:19], s21 offen lds\n"
    s = f"""
.text
.globl {name}
.p2align 8
.type {name},@function
{name}:
    s_memrealtime s[24:25]
    s_load_dwordx2 s[4:5], s[0:1], 0
    v_lshrrev_b32 v1, 6, v0
    v_and_b32 v0, 63, v0
    v_readfirstlane_b32 s12, v1
    {"v_lshrrev_b32 v2, 3, v0" if col else "v_lshlrev_b32 v2, 4, v0"}
    {"v_lshlrev_b32 v2, 10, v2" if col else ""}
    {"v_and_b32 v3, 7, v0" if col else ""}
    {"v_lshl_add_u32 v2, v3, 4, v2" if col else ""}
    s_lshr_b32 s13, s2, 3
    s_and_b32 s14, s13, 7          ; hg
    s_lshr_b32 s15, s13, 3         ; q
    s_add_u32 s22, s12, s15
    s_and_b32 s22, s22, 3
    s_lshl_b32 s23, s22, 14
    s_waitcnt lgkmcnt(0)
    s_add_u32 s16, s4, 0x400000
    s_addc_u32 s17, s5, 0
    s_mov_b32 s18, 0x2000000
    s_mov_b32 s19, 0x20000
"""
    if col:   s += "    s_lshl_b32 s27, s14, 7\n"
    else:     s += "    s_lshl_b32 s20, s22, 14\n    s_lshl_b32 s21, s14, 16\n    s_add_u32 s20, s20, s21\n"
    if not share: s += "    s_and_b32 s21, s2, 7\n    s_lshl_b32 s21, s21, 19\n    s_add_u32 s27, s27, s21\n"
    s += body + f"""    s_waitcnt vmcnt(0)
    s_memrealtime s[26:27]
    s_waitcnt lgkmcnt(0)
    s_sub_u32 s26, s26, s24
    s_lshl_b32 s22, s2, 4
    s_add_u32 s22, s22, s12
    s_lshl_b32 s22, s22, 2
    v_mov_b32 v2, s22
    v_mov_b32 v4, s26
    global_store_dword v2, v4, s[4:5]
    s_endpgm
.section .rodata,"a"
.p2align 6
.amdhsa_kernel {name}
  .amdhsa_next_free_vgpr 128
  .amdhsa_next_free_sgpr 96
  .amdhsa_accum_offset 128
  .amdhsa_group_segment_fixed_size 0
  .amdhsa_kernarg_size 8
  .amdhsa_user_sgpr_count 2
  .amdhsa_user_sgpr_kernarg_segment_ptr 1
  .amdhsa_system_sgpr_workgroup_id_x 1
.end_amdhsa_kernel
"""
    ubgen.kernels.append((name, s, 128))
build("rot_shared", 1, 1); build("rot_priv", 1, 0); build("rot_sh_touch", 1, 1, 1); build("rot_pr_touch", 1, 0, 1)
emit("ub20.s")
```

```python
from ubgen import *
import ubgen
KF, VF, S0, S1, O, P, Q = 8, 40, 104, 120, 136, 152, 160
def build(name, ones="all", qk=True, pv=True, ex=True, cv=True, rows=12, pvshape=32):
    s = f"""
.text
.globl {name}
.p2align 8
.type {name},@function
{name}:
    s_load_dwordx2 s[4:5], s[0:1], 0
    v_lshrrev_b32 v1, 6, v0
    v_and_b32 v0, 63, v0
    v_readfirstlane_b32 s12, v1
    v_lshlrev_b32 v1, 4, v0
    s_waitcnt lgkmcnt(0)
    s_add_u32 s16, s4, 0x100000
    s_addc_u32 s17, s5, 0
    s_mov_b32 s18, 0x1000000
    s_mov_b32 s19, 0x20000
    s_lshl_b32 s20, s12, 15
"""
    for i in range(25):
        r = KF + 4 * i if i < 24 else Q
        s += f"    buffer_load_dwordx4 v[{r}:{r+3}], v1, s[16:19], s20 offen\n    s_add_u32 s20, s20, 1024\n"
    s += "    s_waitcnt vmcnt(0)\n"
    s += "    s_mov_b32 exec_lo, 0xffff0000\n    s_mov_b32 exec_hi, 0xffff0000\n"
    if ones != "rand":
        for i in range(64): s += f"    v_mov_b32 v{VF+i}, {'0x3f803f80' if ones == 'all' else '0'}\n"
        if ones == "two":
            s += "    s_mov_b32 exec_lo, 0x00110000\n    s_mov_b32 exec_hi, 0x00110000\n"
            for i in range(64): s += f"    v_mov_b32 v{VF+i}, 0x3f803f80\n"
    s += "    s_mov_b64 exec, -1\n"
    for i in range(S0, P + 8): s += f"    v_mov_b32 v{i}, 0\n"
    s += "    s_mov_b32 s21, 0\n    s_lshl_b32 s22, s2, 4\n    s_add_u32 s22, s22, s12\n    s_lshl_b32 s22, s22, 8\n    v_mov_b32 v2, s22\n    s_barrier\n"
    s += f".p2align 6\nL_{name}:\n"
    s += "    s_memtime s[24:25]\n    s_memrealtime s[26:27]\n"
    for j in range(8):
        Sc, Sn = (S0, S1) if j % 2 == 0 else (S1, S0)
        E = (lambda i: f"    v_exp_f32 v{Sc+i}, v{Sc+i}\n") if ex else (lambda i: "")
        C = (lambda i: f"    v_cvt_pk_bf16_f32 v{P+i}, v{Sc+2*i}, v{Sc+2*i+1}\n") if cv else (lambda i: "")
        def M(d, x, y, c):
            return f"    v_mfma_f32_32x32x16_bf16 v[{d}:{d+15}], v[{x}:{x+3}], v[{y}:{y+3}], {('v[%d:%d]' % (c, c+15)) if c is not None else 0}\n"
        def PV(x, y, c):
            if not pv: return ""
            if pvshape == 32: return M(O, x, y, c)
            d = O if y == P else O + 4
            return f"    v_mfma_f32_16x16x32_bf16 v[{d}:{d+3}], v[{x}:{x+3}], v[{y}:{y+3}], v[{d}:{d+3}]\n"
        if qk: s += M(Sn, KF + 4 * ((j + 1) & 7), Q, None)
        for i in range(4): s += E(i)
        s += PV(VF + 4 * ((2 * j - 1) % 16), P + 4, O)
        for i in range(4, 8): s += E(i)
        for i in range(4): s += C(i)
        s += E(8) + E(9)
        if not ex: s += "    s_nop 1\n"
        s += PV(VF + 8 * j, P, O if j else None)
        for i in range(10, 16): s += E(i)
        for i in range(4, 8): s += C(i)
        if not ex: s += "    s_nop 7\n"
    s += f"""    s_waitcnt lgkmcnt(0)
    v_mov_b32 v4, s24
    v_mov_b32 v5, s26
    global_store_dwordx2 v2, v[4:5], s[4:5]
    v_add_u32 v2, 8, v2
    s_add_u32 s21, s21, 1
    s_cmp_lt_u32 s21, {rows}
    s_cbranch_scc1 L_{name}
    s_endpgm
.section .rodata,"a"
.p2align 6
.amdhsa_kernel {name}
  .amdhsa_next_free_vgpr 168
  .amdhsa_next_free_sgpr 96
  .amdhsa_accum_offset 168
  .amdhsa_group_segment_fixed_size 0
  .amdhsa_kernarg_size 8
  .amdhsa_user_sgpr_count 2
  .amdhsa_user_sgpr_kernarg_segment_ptr 1
  .amdhsa_system_sgpr_workgroup_id_x 1
.end_amdhsa_kernel
"""
    ubgen.kernels.append((name, s, 168))

build("full_two", ones="two")
n, s, v = ubgen.kernels[-1]
import re
q = s.replace("full_two", "pvswap")
q = re.sub(r"(v_mfma_f32_32x32x16_bf16 v\[136:151\]), (v\[\d+:\d+\]), (v\[\d+:\d+\])", r"\1, \3, \2", q)
ubgen.kernels.append(("pvswap", q, 168))
q = s.replace("full_two", "qkswap")
q = re.sub(r"(v_mfma_f32_32x32x16_bf16 v\[1(?:04|20):\d+\]), (v\[\d+:\d+\]), (v\[\d+:\d+\])", r"\1, \3, \2", q)
ubgen.kernels.append(("qkswap", q, 168))
build("vzero", ones="zero")
n, s2, v = ubgen.kernels[-1]
s2 = s2.replace("s_mov_b32 exec_lo, 0xffff0000\n    s_mov_b32 exec_hi, 0xffff0000", "s_mov_b64 exec, -1")
ubgen.kernels[-1] = (n, s2, v)
emit("ub24.s")
```
